```python
import torch

def _softmax(x, axis=-1):
    return torch.softmax(x, dim=axis)
def _gelu(x):
    return torch.nn.functional.gelu(x, approximate="tanh")
def _silu(x):
    return torch.nn.functional.silu(x)
def _sigmoid(x):
    return torch.sigmoid(x)
def _layernorm(x, axis=-1, eps=1e-5):
    m = x.mean(dim=axis, keepdim=True)
    v = x.var(dim=axis, keepdim=True, unbiased=False)
    return (x - m) / torch.sqrt(v + eps)
def _scatter_add(tgt, idx, src, axis=0):
    return tgt.clone().index_add_(axis, idx, src)
def _segment_sum(src, seg, n):
    out = torch.zeros((n,) + src.shape[1:], dtype=src.dtype)
    return out.index_add_(0, seg, src)
def _pad(x, pw):
    flat = tuple(v for pair in reversed(pw) for v in pair)
    return torch.nn.functional.pad(x, flat)

kernel_name = 'sequential_preLN__mha_block__dense_activation_silu__prompt'

def setup_inputs():

    _w = (lambda a: (lambda t: t.to(torch.bfloat16) if t.is_floating_point() else t)(torch.as_tensor(a)))
    def _A_setup():
        B, S, D, H = 1, 2048, 448, 16
        return {
            "x": _w((lambda *s: torch.randn(*s, dtype=torch.bfloat16) * 0.05)(B, S, D)),
            "wqkv": _w((lambda *s: torch.randn(*s, dtype=torch.bfloat16) * 0.05)(D, 3 * D)),
            "wo": _w((lambda *s: torch.randn(*s, dtype=torch.bfloat16) * 0.05)(D, D)),
        }
    _A_in = _A_setup()

    def _B_setup():
        B, S, D, F = 1, 2048, 448, 1792
        return {
            "x": _w((lambda *s: torch.randn(*s, dtype=torch.bfloat16) * 0.05)(B, S, D)),
            "w1": _w((lambda *s: torch.randn(*s, dtype=torch.bfloat16) * 0.8)(D, F) * (D ** -0.5)),
            "w2": _w((lambda *s: torch.randn(*s, dtype=torch.bfloat16) * 0.2)(F, D) * (F ** -0.5)),
        }
    _B_in = _B_setup()

    return {
        "A_x": _A_in["x"],
        "A_wqkv": _A_in["wqkv"],
        "A_wo": _A_in["wo"],
        "B_x": _B_in["x"],
        "B_w1": _B_in["w1"],
        "B_w2": _B_in["w2"],
    }

def reference(A_x, A_wqkv, A_wo, B_x, B_w1, B_w2):
    def _A_ref(x, wqkv, wo):
        B, S, D = x.shape
        H = 16
        Dh = D // H
        qkv = (lambda x, *d: x.permute(*d))((x @ wqkv).reshape(B, S, 3, H, Dh), 2, 0, 3, 1, 4)
        q, k, v = qkv[0], qkv[1], qkv[2]
        scores = torch.einsum("bhqd,bhkd->bhqk", q, k) * (Dh ** -0.5)
        p = _softmax(scores, axis=-1)
        o = torch.einsum("bhqk,bhkd->bhqd", p, v)
        return (lambda x, *d: x.permute(*d))(o, 0, 2, 1, 3).reshape(B, S, D) @ wo

    def _B_ref(x, w1, w2):
        h = torch.einsum("bsd,df->bsf", x, w1)
        h = _silu(h)
        out = torch.einsum("bsf,fd->bsd", h, w2)
        return out

    x = A_x
    h = x + _A_ref(_layernorm(x, axis=-1), A_wqkv, A_wo)
    h2 = h + _B_ref(_layernorm(h, axis=-1), B_w1, B_w2)
    return h2
```

```python
import re

REG_RE = re.compile(r'^(-|\|)?(?:abs\()?([vas])(\d+|\[(\d+):(\d+)\])\)?\|?$')

def regs_of(tok):
    tok = tok.strip()
    if tok == 'vcc': return [('s', 106), ('s', 107)]
    if tok == 'vcc_lo': return [('s', 106)]
    if tok == 'exec': return [('s', 126), ('s', 127)]
    if tok == 'm0': return [('s', 124)]
    m = REG_RE.match(tok)
    if not m: return []
    k = m.group(2)
    if m.group(4) is not None:
        return [(k, i) for i in range(int(m.group(4)), int(m.group(5)) + 1)]
    return [(k, int(m.group(3)))]

TRANS = ('v_exp_f32', 'v_log_f32', 'v_rcp_f32', 'v_rsq_f32', 'v_sqrt_f32', 'v_sin_f32', 'v_cos_f32')

class Ins:
    __slots__ = ('text', 'mn', 'ops', 'mods', 'rd', 'wr', 'kind', 'label', 'target', 'srcc', 'ab', 'passes', 'data')
    def __init__(self, text):
        self.text = text
        self.label = None; self.target = None
        self.rd = []; self.wr = []; self.srcc = []; self.ab = []; self.passes = 0; self.data = []
        t = text.split(';')[0].strip()
        if t.endswith(':'):
            self.kind = 'label'; self.label = t[:-1]; self.mn = ''; return
        if t.startswith('.') or not t:
            self.kind = 'dir'; self.mn = t; return
        parts = t.split(None, 1)
        mn = self.mn = parts[0]
        rest = parts[1] if len(parts) > 1 else ''
        ops = []; depth = 0; cur = ''
        for ch in rest:
            if ch == '[': depth += 1
            if ch == ']': depth -= 1
            if ch == ',' and depth == 0:
                ops.append(cur.strip()); cur = ''
            else: cur += ch
        if cur.strip(): ops.append(cur.strip())
        mods = ''
        if ops:
            l = ops[-1].split(None, 1)
            if len(l) > 1 and not l[0].startswith('hwreg') and not mn.startswith('s_waitcnt'):
                ops[-1] = l[0]; mods = l[1]
        self.ops = ops; self.mods = mods
        R = lambda i: regs_of(ops[i]) if i < len(ops) else []
        if mn.startswith('v_mfma'):
            self.kind = 'mfma'
            self.wr = R(0); self.ab = R(1) + R(2); self.srcc = R(3); self.rd = self.ab + self.srcc
            self.passes = 8 if '32x32x16' in mn else (4 if '16x16x32' in mn else 16)
        elif mn.startswith('v_'):
            self.kind = 'valu'
            if mn.startswith('v_cmp'):
                self.wr = R(0); self.rd = R(1) + R(2)
            elif mn.startswith('v_permlane') :
                self.wr = R(0) + R(1); self.rd = R(0) + R(1)
            else:
                self.wr = R(0)
                for i in range(1, len(ops)): self.rd += R(i)
                if mn.startswith(('v_fmac', 'v_dot2c', 'v_writelane')) or 'dpp' in mn or 'quad_perm' in mods or 'row_' in mods: self.rd += R(0)
                if mn.startswith('v_cndmask') and len(ops) == 3: self.rd += regs_of('vcc')
                if mn.startswith(('v_add_co', 'v_sub_co', 'v_addc_co')): self.wr += R(1)
        elif mn.startswith('buffer_') or mn.startswith('global_'):
            self.kind = 'vmem'
            if mn in ('buffer_wbl2', 'buffer_inv'):
                pass
            elif 'load' in mn:
                if ' lds' in (' ' + mods):
                    self.rd = R(0) + R(1) + R(2) + regs_of('m0')
                else:
                    self.wr = R(0); self.rd = R(1) + R(2) + R(3)
            else:
                self.data = R(0)
                self.rd = R(0) + R(1) + R(2) + R(3)
                if 'atomic' in mn and 'sc0' in mods: self.wr = R(0)
        elif mn.startswith('ds_'):
            self.kind = 'ds'
            if mn.startswith(('ds_read', 'ds_bpermute', 'ds_swizzle', 'ds_permute')):
                self.wr = R(0)
                for i in range(1, len(ops)): self.rd += R(i)
            else:
                for i in range(len(ops)): self.rd += R(i)
        elif mn.startswith('s_'):
            self.kind = 'salu'
            if mn.startswith(('s_cbranch', 's_branch')):
                self.kind = 'branch'; self.target = ops[0]
            elif mn.startswith(('s_load', 's_memtime', 's_memrealtime')):
                self.kind = 'smem'; self.wr = R(0); self.rd = R(1)
            elif mn.startswith(('s_cmp', 's_bitcmp', 's_waitcnt', 's_barrier', 's_nop', 's_endpgm', 's_sleep', 's_setprio')):
                for i in range(len(ops)): self.rd += R(i)
            else:
                self.wr = R(0)
                for i in range(1, len(ops)): self.rd += R(i)
                if 'saveexec' in mn: self.wr += regs_of('exec')
        else:
            raise ValueError('unknown instr: ' + text)
    def states(self):
        if self.kind in ('label', 'dir'): return 0
        if self.mn == 's_nop': return int(self.ops[0]) + 1
        return 1

def need(p, c):
    n = 0
    pw = set(p.wr);
    crd = set(c.rd); cwr = set(c.wr)
    vw = {r for r in pw if r[0] in 'va'}
    sw = {r for r in pw if r[0] == 's'}
    if p.kind == 'valu':
        if c.kind == 'mfma' and vw & crd: n = max(n, 2)
        if c.kind == 'valu':
            if p.mn.startswith(TRANS) and not c.mn.startswith(TRANS) and vw & crd: n = max(n, 1)
            if p.mn.startswith(TRANS) and c.mn.startswith(TRANS) and vw & crd: n = max(n, 1)
            if c.mn.startswith('v_permlane') and vw & crd: n = max(n, 2)
            if ('dpp' in c.mn or 'quad_perm' in c.mods or 'row_' in c.mods) and vw & crd: n = max(n, 2)
            if c.mn.startswith(('v_readlane', 'v_readfirstlane')) and vw & crd: n = max(n, 1)
            if sw & crd: n = max(n, 4 if c.mn.startswith(('v_readlane', 'v_writelane')) else 2)
            if p.mn.startswith('v_dot2'):
                if (vw & crd or vw & cwr):
                    same = c.mn == p.mn
                    if same:
                        ab = set()
                        for i in (1, 2):
                            ab |= set(regs_of(c.ops[i]))
                        if vw & ab: n = max(n, 3)
                    else: n = max(n, 3)
        if p.mn.startswith('v_dot2') and c.kind in ('mfma', 'vmem', 'ds') and vw & crd: n = max(n, 3)
        if c.kind == 'vmem' and sw & crd: n = max(n, 5)
        if c.kind in ('salu', 'branch', 'smem') and sw & crd: n = max(n, 1)
        if c.kind == 'branch' and 'vcc' in c.mn and sw & set(regs_of('vcc')): n = max(n, 5)
    if p.kind == 'mfma':
        big = {8: 12, 4: 8, 16: 20}[p.passes]
        if c.kind == 'mfma':
            if vw & set(c.ab): n = max(n, big)
            if vw & set(c.srcc):
                if c.srcc == p.wr and c.passes == p.passes: pass
                else: n = max(n, big - 2)
            elif vw & cwr and not (c.wr == p.wr and c.srcc == p.wr):
                n = max(n, big)
        elif c.kind in ('valu', 'vmem', 'ds'):
            if vw & crd or vw & cwr: n = max(n, big)
        if c.kind == 'valu' and set(p.srcc) & cwr: n = max(n, {8: 7, 4: 3, 16: 15}[p.passes])
    if p.kind == 'salu' and ('s', 124) in pw and c.kind == 'vmem' and ('s', 124) in crd: n = max(n, 1)
    if p.kind == 'vmem' and len(p.data) >= 3 and set(p.data) & cwr and c.kind in ('valu', 'mfma', 'ds', 'vmem'): n = max(n, 2)
    if p.kind == 'ds' and p.mn.startswith('ds_write') and c.kind == 'valu' and (set(p.rd) & cwr) and len(p.rd) >= 4: n = max(n, 1)
    return n

MAXW = 20

class Asm:
    def __init__(self):
        self.L = []
        self.vm = 0; self.vm_done = 0
        self.lg = 0; self.lg_done = 0
        self.uid = 0
    def __call__(self, text):
        out = None
        for line in text.strip().split('\n'):
            line = line.strip()
            if not line or line.startswith(';'): continue
            i = Ins(line)
            self.L.append(i)
            if i.kind == 'vmem' and i.mn not in ('buffer_inv',):
                self.vm += 1; out = self.vm
            elif i.kind == 'ds':
                self.lg += 1; out = self.lg
            elif i.mn == 's_waitcnt':
                m = re.search(r'vmcnt\((\d+)\)', line)
                if m: self.vm_done = max(self.vm_done, self.vm - int(m.group(1)))
                m = re.search(r'lgkmcnt\((\d+)\)', line)
                if m: self.lg_done = max(self.lg_done, self.lg - int(m.group(1)))
        return out
    def wait_vm(self, tok):
        if tok is None or tok <= self.vm_done: return
        n = self.vm - tok
        self('s_waitcnt vmcnt(%d)' % min(n, 63))
    def wait_lg(self, tok):
        if tok is None or tok <= self.lg_done: return
        n = self.lg - tok
        self('s_waitcnt lgkmcnt(%d)' % min(n, 15))
    def wait(self, vm=None, lg=None):
        a = []
        if vm is not None and vm > self.vm_done: a.append('vmcnt(%d)' % min(self.vm - vm, 63))
        if lg is not None and lg > self.lg_done: a.append('lgkmcnt(%d)' % min(self.lg - lg, 15))
        if a: self('s_waitcnt ' + ' '.join(a))
    def forget(self):
        self.vm_done = -10**9; self.lg_done = -10**9
    def label(self, base):
        self.uid += 1
        return '%s_%d' % (base, self.uid)

    def finalize(self):
        L = self.L
        changed = True
        it = 0
        while changed:
            changed = False; it += 1
            labels = {x.label: i for i, x in enumerate(L) if x.kind == 'label'}
            out = []
            def required(hist, c):
                req = 0; d = 0
                for p in reversed(hist):
                    if d >= MAXW: break
                    n = need(p, c)
                    if n > d: req = max(req, n - d)
                    d += p.states()
                return req
            for i, c in enumerate(L):
                if c.kind not in ('label', 'dir'):
                    hist = out[-40:]
                    for k in range(len(hist) - 1, -1, -1):
                        if hist[k].mn in ('s_branch', 's_endpgm'):
                            hist = hist[k + 1:]; break
                    r = required(hist, c)
                    if r > 0:
                        while r > 0:
                            k = min(r, 16); out.append(Ins('s_nop %d' % (k - 1))); r -= k
                        changed = True
                    if c.kind == 'branch':
                        hist = out[-40:] + [c]
                        j = labels[c.target]; d = 0; worst = 0
                        h = list(hist)
                        while j < len(L) and d < MAXW:
                            x = L[j]
                            if x.kind not in ('label', 'dir'):
                                req = 0; dd = d
                                for p in reversed(hist):
                                    if dd >= MAXW: break
                                    n = need(p, x)
                                    if n > dd: req = max(req, n - dd)
                                    dd += p.states()
                                worst = max(worst, req)
                                d += x.states()
                                if x.mn in ('s_branch', 's_endpgm'): break
                            j += 1
                        while worst > 0:
                            k = min(worst, 16); out.append(Ins('s_nop %d' % (k - 1))); worst -= k
                            changed = True
                out.append(c)
            L = out
            if it > 10: raise RuntimeError('hazard pass does not converge')
        self.L = L
        return '\n'.join(('  ' if x.kind not in ('label',) else '') + x.text for x in L) + '\n'
```

```python
import sys, struct, math
from dsl import Asm

MB = 1 << 20
QF, KVF, OF, HF, ST, WOF, W1F, CS1, W2F, AF = 0, 2*MB, 6*MB, 8*MB, 10*MB, 11*MB, 12*MB, 13*MB + 768*1024, 14*MB, 16*MB
WS_REC = 24*MB
OOB = 0x40000000
def f32(x): return '0x%08x' % struct.unpack('<I', struct.pack('<f', x))[0]
QSCALE = math.log2(math.e) / math.sqrt(28.0)

def vr(b, n=4): return 'v[%d:%d]' % (b, b+n-1)
def ar(b, n=4): return 'a[%d:%d]' % (b, b+n-1)
def sr(b, n=4): return 's[%d:%d]' % (b, b+n-1)

def srd(a, d, base, nrec):
    a(f'''s_mov_b32 s{d}, s{base}
    s_mov_b32 s{d+1}, s{base+1}
    s_mov_b32 s{d+2}, {nrec}
    s_mov_b32 s{d+3}, 0x00020000''')

def rowstat(a, vsum, vsq, vmb, vrs, t0, t1):
    a(f'''v_mul_f32 v{vsum}, {f32(1/448)}, v{vsum}
    v_mul_f32 v{vsq}, {f32(1/448)}, v{vsq}
    v_fma_f32 v{vsq}, -v{vsum}, v{vsum}, v{vsq}
    v_max_f32 v{vsq}, 0, v{vsq}
    v_cvt_pk_bf16_f32 v{vmb}, -v{vsum}, -v{vsum}
    v_cvt_pk_bf16_f32 v{t0}, v{vsq}, v{vsq}
    v_and_b32 v{t0}, 0xffff0000, v{t0}
    v_add_f32 v{t0}, {f32(1e-5)}, v{t0}
    v_cvt_pk_bf16_f32 v{t0}, v{t0}, v{t0}
    v_and_b32 v{t0}, 0xffff0000, v{t0}
    v_sqrt_f32 v{t0}, v{t0}
    v_cvt_pk_bf16_f32 v{t0}, v{t0}, v{t0}
    v_and_b32 v{t0}, 0xffff0000, v{t0}
    v_rcp_f32 v{vrs}, v{t0}''')

K1_LW, K1_LX, K1_LS, K1_LC = 0, 86016, 143360, 144384
K1_LDS = 144384 + 1536

def k1(a):
    END = 'K1_END'
    XL, ACC, AB, BB, STt, TM = 16, 128, 176, 200, 208, 212
    a(f'''
    s_cmp_ge_u32 s2, 256
    s_cbranch_scc1 {END}
    s_load_dwordx4 s[4:7], s[0:1], 0
    s_load_dwordx2 s[8:9], s[0:1], 16
    s_load_dwordx4 s[12:15], s[0:1], 32
    s_load_dwordx2 s[10:11], s[0:1], 64
    v_and_b32 v1, 63, v0
    v_lshrrev_b32 v2, 6, v0
    v_readfirstlane_b32 s16, v2
    s_and_b32 s17, s2, 7
    s_lshr_b32 s18, s2, 3
    s_lshr_b32 s19, s17, 1
    s_lshl_b32 s19, s19, 2
    s_and_b32 s20, s18, 3
    s_add_u32 s19, s19, s20
    s_and_b32 s20, s17, 1
    s_lshl_b32 s20, s20, 3
    s_lshr_b32 s21, s18, 2
    s_add_u32 s20, s20, s21
    s_lshl_b32 s21, s19, 2
    s_add_u32 s21, s21, s16
    ''')
    a(f'''
    v_lshrrev_b32 v4, 2, v1
    v_mul_u32_u24 v2, 896, v4
    v_lshrrev_b32 v5, 4, v1
    v_xor_b32 v5, v5, v1
    v_and_b32 v5, 3, v5
    v_lshl_add_u32 v2, v5, 4, v2
    s_mul_i32 s22, s16, 14336
    s_add_u32 s22, s22, {K1_LX}
    v_lshl_add_u32 v3, v1, 4, s22
    ''')
    for u in range(3):
        a(f'''
        v_add_u32 v9, {64*u}, v1
        v_mul_u32_u24 v10, 171, v9
        v_lshrrev_b32 v10, 11, v10
        v_mul_u32_u24 v11, 12, v10
        v_sub_u32 v11, v9, v11
        v_mul_u32_u24 v10, 2688, v10
        v_lshl_add_u32 v{6+u}, v11, 4, v10
        ''')
        if u: a(f'v_subrev_u32 v{6+u}, {1024*u}, v{6+u}')
    a(f'''
    s_lshl_b32 s29, s16, 8
    s_add_u32 s29, s29, s2
    s_mov_b32 s27, {OOB}
    s_mov_b32 s28, {OOB}
    s_waitcnt lgkmcnt(0)
    s_cmp_lt_u32 s29, 224
    s_cbranch_scc0 K1_RL_NOTW1
    s_mov_b32 s23, 0
    s_mov_b32 s24, 3584
    s_lshr_b32 s30, s29, 2
    s_and_b32 s31, s29, 3
    s_mul_i32 s25, s31, {112*3584}
    s_lshl_b32 s26, s30, 6
    s_add_u32 s25, s25, s26
    s_mul_i32 s26, s30, 28672
    s_mul_i32 s28, s31, 7168
    s_add_u32 s26, s26, s28
    s_add_u32 s26, s26, {W1F}
    s_lshl_b32 s30, s30, 7
    s_add_u32 s28, s28, s30
    s_add_u32 s28, s28, {CS1}
    s_mov_b32 s44, s12
    s_mov_b32 s45, s13
    s_mov_b32 s46, 1605632
    s_branch K1_RL_GO
    K1_RL_NOTW1:
    s_mov_b32 s24, 896
    s_cmp_lt_u32 s29, 480
    s_cbranch_scc0 K1_RL_NOTW2
    s_mov_b32 s23, 1
    s_sub_u32 s29, s29, 224
    s_lshr_b32 s30, s29, 4
    s_and_b32 s31, s29, 15
    s_mul_i32 s26, s30, 114688
    s_mul_i32 s25, s31, 7168
    s_add_u32 s26, s26, s25
    s_add_u32 s26, s26, {W2F}
    s_mov_b32 s44, s14
    s_mov_b32 s45, s15
    s_mov_b32 s46, 1605632
    s_branch K1_RL_COL
    K1_RL_NOTW2:
    s_mov_b32 s23, 2
    s_sub_u32 s29, s29, 480
    s_lshr_b32 s30, s29, 2
    s_and_b32 s31, s29, 3
    s_lshl_b32 s26, s30, 15
    s_lshl_b32 s25, s31, 13
    s_add_u32 s26, s26, s25
    s_add_u32 s26, s26, {WOF}
    s_add_u32 s27, s26, 4096
    s_mov_b32 s44, s8
    s_mov_b32 s45, s9
    s_mov_b32 s46, 401408
    s_cmp_lt_u32 s29, 64
    s_cbranch_scc1 K1_RL_COL
    s_mov_b32 s26, {OOB}
    s_mov_b32 s27, {OOB}
    s_mov_b32 s46, 0
    K1_RL_COL:
    s_mul_i32 s25, s31, {112*896}
    s_lshr_b32 s31, s30, 1
    s_mul_i32 s31, s31, 112
    s_add_u32 s25, s25, s31
    s_and_b32 s31, s30, 1
    s_lshl_b32 s31, s31, 6
    s_add_u32 s25, s25, s31
    K1_RL_GO:
    s_mov_b32 s47, 0x00020000
    ''')
    srd(a, 32, 4, 1835008)
    srd(a, 36, 6, 1204224)
    srd(a, 40, 10, WS_REC)
    a(f'''
    v_and_b32 v5, 3, v1
    v_lshlrev_b32 v5, 4, v5
    v_mad_u32_u24 v9, v4, s24, v5
    s_lshl_b32 s30, s24, 4
    s_mov_b32 s31, s22
    ''')
    for i in range(7):
        a(f's_mov_b32 m0, s31')
        t_rl = a(f'buffer_load_dwordx4 v9, s[44:47], s25 offen lds')
        if i < 6:
            a(f's_add_u32 s25, s25, s30\ns_add_u32 s31, s31, 1024')
    a(f'''
    s_mul_i32 s48, s21, 28672
    s_add_u32 s49, s48, 14336
    s_mul_i32 s50, s16, 43008
    s_mul_i32 s51, s20, 168
    s_add_u32 s50, s50, s51
    s_mul_i32 s51, s16, 3072
    ''')
    def xloads(s0, s1):
        t = None
        for s in range(s0, s1):
            for rh in range(2):
                t = a(f'buffer_load_dwordx4 {vr(XL + 4*(2*s+rh))}, v2, s[32:35], s{48+rh} offen offset:{64*s}')
        return t
    def wloads(g0, g1):
        t = None
        for g in range(g0, g1):
            a(f's_add_u32 m0, s51, {K1_LW + g*12288}')
            for u in range(3):
                t = a(f'buffer_load_dwordx4 v{6+u}, s[36:39], s50 offen offset:{1024*u} lds')
            a(f's_add_u32 s50, s50, 172032')
        return t
    t_x1 = xloads(0, 7)
    t_w1 = wloads(0, 4)
    t_x2 = xloads(7, 14)
    t_w2 = wloads(4, 7)
    a(f'''
    v_bfe_u32 v10, v1, 2, 2
    v_lshrrev_b32 v11, 5, v1
    v_bfe_u32 v12, v1, 4, 1
    v_and_b32 v13, 3, v1
    v_lshlrev_b32 v13, 3, v13
    v_lshl_add_u32 v13, v12, 5, v13
    v_lshl_add_u32 v14, v11, 2, v10
    v_lshl_add_u32 v14, v14, 6, v13
    v_add_u32 v14, s22, v14
    v_lshl_add_u32 v15, v11, 3, v10
    v_mul_u32_u24 v15, 192, v15
    v_add_u32 v15, v15, v13
    ''')
    a(f's_mov_b32 s52, 0\ns_mov_b32 s53, -1')
    for r in range(48): a(f'v_mov_b32 v{ACC+r}, 0')
    for r in range(4): a(f'v_mov_b32 v{STt+r}, 0')
    a(f'v_mov_b32 v{TM+40}, 0x3f803f80')
    ONES = TM + 40
    RF = TM
    a.wait_vm(t_rl)
    a('s_cmp_eq_u32 s23, 1\ns_cbranch_scc1 K1_RL_T1\ns_cmp_eq_u32 s23, 2\ns_cbranch_scc1 K1_RL_T2')
    def trs(rows):
        for i, (r0, r1) in enumerate(rows):
            a(f'ds_read_b64_tr_b16 {vr(RF+4*i, 2)}, v14 offset:{r0*64}')
            a(f'ds_read_b64_tr_b16 {vr(RF+4*i+2, 2)}, v14 offset:{r1*64}')
    trs([(0, 8), (16, 24), (32, 40), (48, 104), (56, 64), (72, 80), (88, 96)])
    a('s_waitcnt lgkmcnt(0)')
    a(f'v_mov_b32 v{TM+32}, 0\nv_mov_b32 v{TM+33}, 0')
    for i in range(28): a(f'v_dot2c_f32_bf16 v{TM+32+i%2}, v{RF+i}, v{ONES}')
    a(f'''v_add_f32 v{TM+32}, v{TM+32}, v{TM+33}
    v_mov_b32 v{TM+33}, v{TM+32}
    v_permlane32_swap_b32 v{TM+32}, v{TM+33}
    v_add_f32 v{TM+32}, v{TM+32}, v{TM+33}
    s_branch K1_RL_ST
    K1_RL_T1:''')
    trs([(16*i, 16*i+8) for i in range(7)])
    a('s_waitcnt lgkmcnt(0)\ns_branch K1_RL_ST\nK1_RL_T2:')
    trs([(28*(i//2) + 16*(i%2), 28*(i//2) + 16*(i%2) + 8) for i in range(8)])
    a('s_waitcnt lgkmcnt(0)')
    for h in range(4):
        for d in (2, 3):
            r = RF + 4*(2*h+1) + d
            a(f'v_cndmask_b32 v{r}, v{r}, 0, s[52:53]')
    a('K1_RL_ST:')
    a(f'''v_lshlrev_b32 v5, 4, v1
    s_add_u32 s30, s26, 4096
    v_and_b32 v9, 31, v1
    v_lshlrev_b32 v9, 2, v9''')
    for i in range(8):
        so = 's26' if i < 4 else ('s30' if i < 7 else 's27')
        a(f'buffer_store_dwordx4 {vr(RF+4*i)}, v5, s[40:43], {so} offen offset:{(i%4)*1024}')
    a(f'buffer_store_dword v{TM+32}, v9, s[40:43], s28 offen')
    def stats(s0, s1):
        for s in range(s0, s1):
            for d in range(4):
                for rh in range(2):
                    r = XL + 4*(2*s+rh) + d
                    a(f'v_dot2c_f32_bf16 v{STt+2*rh}, v{r}, v{ONES}')
                    a(f'v_dot2c_f32_bf16 v{STt+2*rh+1}, v{r}, v{r}')
    def stage(s0):
        for s in range(7):
            for rh in range(2):
                a(f'ds_write_b128 v3, {vr(XL + 4*(2*(s0+s)+rh))} offset:{(2*s+rh)*1024}')
    a.wait_vm(t_x1)
    stage(0)
    stats(0, 7)
    a(f'''
    v_and_b32 v9, 31, v1
    v_lshrrev_b32 v10, 4, v9
    v_lshlrev_b32 v10, 10, v10
    v_and_b32 v12, 15, v1
    v_lshl_add_u32 v10, v12, 6, v10
    v_add_u32 v10, s22, v10
    v_bfe_u32 v12, v1, 2, 2
    v_xor_b32 v4, v11, v12
    v_lshl_add_u32 v4, v4, 4, v10
    v_xor_b32 v5, 32, v4
    ''')
    a.wait(vm=t_w1)
    a('s_waitcnt lgkmcnt(0)\ns_barrier')
    def rdB(j):
        return a(f'ds_read_b128 {vr(BB + 4*(j%2))}, v{4 + j%2} offset:{(j//2)*2048}')
    def rdA(j, f, addr, dst):
        a(f'ds_read_b64_tr_b16 {vr(dst, 2)}, v{addr} offset:{j*3072 + 56*f}')
        return a(f'ds_read_b64_tr_b16 {vr(dst+2, 2)}, v{addr} offset:{j*3072 + 768 + 56*f}')
    def gpass():
        tok = {}
        def Ad(j, f): return AB + 12*(j%2) + 4*f
        rdB(0)
        for f in range(3): tok[(0, f)] = rdA(0, f, 15, Ad(0, f))
        for j in range(14):
            for f in range(3):
                a.wait_lg(tok[(j, f)])
                a(f'v_mfma_f32_32x32x16_bf16 {vr(ACC+16*f, 16)}, {vr(Ad(j, f))}, {vr(BB+4*(j%2))}, {vr(ACC+16*f, 16)}')
                if j + 1 < 14:
                    if f == 0: rdB(j+1)
                    tok[(j+1, f)] = rdA(j+1, f, 15, Ad(j+1, f))
    gpass()
    a.wait_vm(t_x2)
    stage(7)
    stats(7, 14)
    for r in range(4):
        a(f'v_add_f32_dpp v{STt+r}, v{STt+r}, v{STt+r} quad_perm:[1,0,3,2] row_mask:0xf bank_mask:0xf')
    for r in range(4):
        a(f'v_add_f32_dpp v{STt+r}, v{STt+r}, v{STt+r} quad_perm:[2,3,0,1] row_mask:0xf bank_mask:0xf')
    a(f'''
    s_lshl_b32 s30, s16, 8
    s_add_u32 s30, s30, {K1_LS}
    v_lshrrev_b32 v9, 2, v1
    v_lshl_add_u32 v9, v9, 3, s30
    ds_write_b64 v9, {vr(STt, 2)}
    ds_write_b64 v9, {vr(STt+2, 2)} offset:128
    v_and_b32 v9, 31, v1
    v_lshl_add_u32 v9, v9, 3, s30
    ''')
    a.wait(vm=t_w2)
    a('s_waitcnt lgkmcnt(0)\ns_barrier')
    a(f'ds_read_b64 {vr(STt, 2)}, v9')
    SEL, CSA = TM, TM + 4
    a(f'''
    s_mul_i32 s30, s16, {7*3072}
    v_add_u32 v12, s30, v15
    v_lshrrev_b32 v9, 4, v1
    v_xor_b32 v9, v9, v1
    v_and_b32 v9, 1, v9
    v_cmp_eq_u32 vcc, 0, v9
    v_cndmask_b32 v{SEL}, 0, v{ONES}, vcc
    v_mov_b32 v{SEL+1}, v{SEL}
    v_mov_b32 v{SEL+2}, v{SEL}
    v_mov_b32 v{SEL+3}, v{SEL}
    ''')
    CB = XL
    toks = []
    for j in range(7):
        for f in range(3):
            toks.append(rdA(j, f, 12, CB + 4*(3*j+f)) if len(toks) < 6 else None)
    n = 0
    for j in range(7):
        for f in range(3):
            i = 3*j + f
            a.wait_lg(toks[i])
            if i + 6 < 21:
                jj, ff = divmod(i + 6, 3)
                toks[i+6] = rdA(jj, ff, 12, CB + 4*(i+6))
            c = '0' if j == 0 else vr(CSA+4*f)
            a(f'v_mfma_f32_16x16x32_bf16 {vr(CSA+4*f)}, {vr(SEL)}, {vr(CB+4*i)}, {c}')
    a(f'v_add_u32 v15, {14*3072}, v15')
    MBr, RS = STt + 2, STt + 3
    rowstat(a, STt, STt+1, MBr, RS, TM+20, TM+21)
    a(f'''
    s_lshl_b32 s30, s16, 2
    s_add_u32 s30, s30, {K1_LC}
    v_and_b32 v9, 15, v1
    v_lshl_add_u32 v9, v9, 4, s30
    ''')
    for f in range(3):
        a(f'ds_write_b32 v9, v{CSA+4*f} offset:{f*512}')
        a(f'ds_write_b32 v9, v{CSA+4*f+1} offset:{f*512+256}')
    gpass()
    a('s_waitcnt lgkmcnt(0)\ns_barrier')
    a(f'''
    v_and_b32 v9, 31, v1
    v_lshlrev_b32 v9, 4, v9
    v_add_u32 v9, {K1_LC}, v9
    ''')
    for f in range(3): a(f'ds_read_b128 {vr(CB+4*f)}, v9 offset:{f*512}')
    BA = CB + 12
    a(f'v_mov_b32 v{BA}, v{MBr}')
    for d in range(1, 4): a(f'v_mov_b32 v{BA+d}, 0')
    a('s_waitcnt lgkmcnt(0)')
    for f in range(3):
        c = CB + 4*f
        a(f'''v_add_f32 v{c}, v{c}, v{c+1}
        v_add_f32 v{c+2}, v{c+2}, v{c+3}
        v_add_f32 v{c}, v{c}, v{c+2}
        v_cvt_pk_bf16_f32 v{c+1}, v{c}, v{c}
        v_and_b32 v{c+1}, 0xffff0000, v{c+1}
        v_sub_f32 v{c+1}, v{c}, v{c+1}
        v_cvt_pk_bf16_f32 v{c}, v{c}, v{c+1}
        v_cndmask_b32 v{c}, v{c}, 0, s[52:53]
        v_mov_b32 v{c+1}, 0
        v_mov_b32 v{c+2}, 0
        v_mov_b32 v{c+3}, 0
        v_mfma_f32_32x32x16_bf16 {vr(ACC+16*f, 16)}, {vr(c)}, {vr(BA)}, {vr(ACC+16*f, 16)}''')
    a(f'''
    v_lshlrev_b32 v2, 4, v1
    v_and_b32 v9, 31, v1
    v_mul_u32_u24 v9, 72, v9
    v_lshl_add_u32 v9, v11, 3, v9
    v_add_u32 v9, s22, v9
    v_bfe_u32 v10, v1, 2, 2
    v_lshl_add_u32 v10, v11, 2, v10
    v_mul_u32_u24 v10, 72, v10
    v_add3_u32 v10, v10, v13, s22
    s_mul_i32 s30, s20, 3
    ''')
    PK = CB + 16
    for f in range(3):
        lv, ld = f'K1_EV{f}', f'K1_ED{f}'
        P = PK + 8*f
        a(f'''
        s_add_u32 s31, s30, {f}
        s_and_b32 s54, s31, 15
        s_lshl_b32 s54, s54, 6
        s_add_u32 s54, s54, s21
        s_lshr_b32 s31, s31, 4
        s_lshl_b32 s55, s54, 11
        s_lshl_b32 s54, s54, 12
        s_add_u32 s54, s54, {KVF}
        s_cmp_eq_u32 s31, 0
        s_cselect_b32 s54, s55, s54
        s_cselect_b32 s56, {f32(QSCALE)}, 1.0
        s_cselect_b32 s57, 0, 0x3f80
        v_mul_f32 v12, s56, v{RS}
        ''')
        for r in range(16): a(f'v_mul_f32 v{ACC+16*f+r}, v{ACC+16*f+r}, v12')
        for d in range(8): a(f'v_cvt_pk_bf16_f32 v{P+d}, v{ACC+16*f+2*d}, v{ACC+16*f+2*d+1}')
        a(f'''v_mov_b32 v12, s57
        v_cndmask_b32 v{P+6}, v{P+6}, v12, s[52:53]
        v_cndmask_b32 v{P+7}, v{P+7}, 0, s[52:53]
        s_cmp_eq_u32 s31, 2
        s_cbranch_scc0 {ld}''')
        for q in range(4): a(f'ds_write_b64 v9, {vr(P+2*q, 2)} offset:{16*q}')
        a('s_waitcnt lgkmcnt(0)')
        for s in range(2):
            for q in range(2):
                a(f'ds_read_b64_tr_b16 {vr(P+4*s+2*q, 2)}, v10 offset:{(16*s+8*q)*72}')
        a(f's_add_u32 s54, s54, 2048\ns_waitcnt lgkmcnt(0)\n{ld}:')
        for s in range(2):
            a(f'buffer_store_dwordx4 {vr(P+4*s)}, v2, s[40:43], s54 offen offset:{1024*s}')
    a(f'{END}:\ns_endpgm')


K2_LO, K2_LM, K2_LF = 0, 49152, 49152 + 3072
K2_LDS = K2_LF + 64

def k2(a):
    END = 'K2_END'
    Q, O, S, P, NM, T = 16, 48, 112, 144, 152, 156
    a(f"""
    s_cmp_ge_u32 s2, 256
    s_cbranch_scc1 {END}
    s_load_dwordx2 s[10:11], s[0:1], 64
    v_and_b32 v1, 63, v0
    v_lshrrev_b32 v2, 6, v0
    v_readfirstlane_b32 s16, v2
    v_lshlrev_b32 v2, 4, v1
    s_and_b32 s17, s2, 7
    s_lshl_b32 s17, s17, 1
    s_bfe_u32 s18, s2, 0x10003
    s_add_u32 s17, s17, s18
    s_lshr_b32 s18, s2, 4
    s_lshl_b32 s19, s17, 6
    s_lshl_b32 s20, s18, 2
    s_add_u32 s20, s20, s19
    s_lshl_b32 s21, s16, 4
    s_add_u32 s21, s21, s19
    s_lshl_b32 s21, s21, 12
    s_add_u32 s21, s21, {KVF}
    s_mov_b32 s22, s21
    s_mov_b32 s52, 0
    s_mov_b32 s53, -1
    s_mov_b32 s58, 0
    """)
    for i in range(4):
        a(f"""s_add_u32 s{24+i}, s16, {i}
        s_and_b32 s{24+i}, s{24+i}, 3
        s_add_u32 s{28+i}, s{24+i}, s20
        s_lshl_b32 s{28+i}, s{28+i}, 11""")
    a('s_waitcnt lgkmcnt(0)')
    srd(a, 40, 10, WS_REC)
    tq = {}
    tk = {}; tv = {}
    def kvload(kt):
        for d in range(4):
            t = a(f'buffer_load_dwordx4 {ar(16*kt+4*d)}, v2, s[40:43], s21 offen offset:{1024*d}')
            if d == 1: tk[kt] = t
        tv[kt] = t
        a('s_add_u32 s21, s21, 4096')
    for i in range(4):
        if i == 1: kvload(0)
        for s in range(2):
            tq[i] = a(f'buffer_load_dwordx4 {vr(Q+8*i+4*s)}, v2, s[40:43], s{28+i} offen offset:{1024*s}')
    NPRE = 13
    for kt in range(1, NPRE): kvload(kt)
    for i in range(1, 4):
        a(f"""s_mul_i32 s23, s{24+i}, 12288
        s_add_u32 s23, s23, {K2_LO + (i-1)*4096}
        v_add_u32 v{2+i}, s23, v2
        s_mul_i32 s23, s{24+i}, 768
        s_add_u32 s23, s23, {K2_LM + (i-1)*256}
        v_lshl_add_u32 v{5+i}, v1, 2, s23""")
    a(f"""s_mul_i32 s23, s16, 12288
    v_add_u32 v9, s23, v2
    s_mul_i32 s23, s16, 768
    s_add_u32 s23, s23, {K2_LM}
    v_lshl_add_u32 v10, v1, 2, s23
    s_lshl_b32 s23, s16, 2
    s_add_u32 s23, s23, {K2_LF}
    v_mov_b32 v11, s23
    v_mov_b32 v12, {K2_LF}
    s_lshl_b32 s23, s18, 2
    s_add_u32 s23, s23, s16
    s_lshl_b32 s23, s23, 4
    s_add_u32 s23, s23, s17
    s_lshl_b32 s23, s23, 11
    s_add_u32 s23, s23, {OF}""")
    def qk(dst, K0, i, part):
        c = '0' if part == 0 else vr(dst, 16)
        a(f'v_mfma_f32_32x32x16_bf16 {vr(dst, 16)}, {K0(part)}, {vr(Q+8*i+4*part)}, {c}')
    def rowmax(src, m, t):
        a(f'v_max3_f32 v{m}, v{src}, v{src+1}, v{src+2}')
        for r in range(3, 15, 2): a(f'v_max3_f32 v{m}, v{m}, v{src+r}, v{src+r+1}')
        a(f"""v_max_f32 v{m}, v{m}, v{src+15}
        v_mov_b32 v{t}, v{m}
        v_permlane32_swap_b32 v{m}, v{t}
        v_max_f32 v{m}, v{m}, v{t}""")
    for i in range(4):
        a.wait_vm(max(tq[i], tk[0]))
        for part in range(2): qk(O+16*i, lambda p: ar(4*p), i, part)
    for i in range(4):
        rowmax(O+16*i, T+i, T+4+i)
    for i in range(4):
        a(f"""v_cvt_pk_bf16_f32 v{T+i}, -v{T+i}, -v{T+i}
        v_and_b32 v{NM+i}, 0xffff0000, v{T+i}
        v_and_b32 v{T+i}, 0xffff, v{T+i}
        v_cndmask_b32 v{Q+8*i+6}, v{Q+8*i+6}, v{T+i}, s[52:53]""")
    N = 64
    def QK(n, part):
        kt, i = divmod(n, 4)
        if part == 0: a.wait_vm(tk[kt])
        qk(S+16*(n%2), lambda p: ar(16*kt+4*p), i, part)
    def PV(n, part):
        kt, i = divmod(n, 4)
        if part == 0: a.wait_vm(tv[kt])
        c = '0' if (kt == 0 and part == 0) else vr(O+16*i, 16)
        a(f'v_mfma_f32_32x32x16_bf16 {vr(O+16*i, 16)}, {ar(16*kt+8+4*part)}, {vr(P+4*part)}, {c}')
    def grp(n, g):
        b = S + 16*(n%2) + 4*g
        for r in range(4): a(f'v_exp_f32 v{b+r}, v{b+r}')
        a(f'v_cvt_pk_bf16_f32 v{P+2*g}, v{b}, v{b+1}')
        a(f'v_cvt_pk_bf16_f32 v{P+2*g+1}, v{b+2}, v{b+3}')
    QK(0, 0); QK(0, 1)
    for n in range(N):
        if n + 1 < N: QK(n+1, 0)
        grp(n, 0)
        if n > 0: PV(n-1, 1)
        grp(n, 1)
        if n + 1 < N: QK(n+1, 1)
        grp(n, 2)
        PV(n, 0)
        grp(n, 3)
        if n % 4 == 3 and NPRE + n//4 - 1 < 16 and n//4 >= 1: kvload(NPRE + n//4 - 1)
    PV(N-1, 1)
    a('K2_COMB:')
    a.forget()
    a(f"""v_add_f32 v{T}, v{O+12}, v{O+28}
    v_add_f32 v{T+1}, v{O+44}, v{O+60}
    v_add_f32 v{T}, v{T}, v{T+1}
    v_mov_b32 v{T+1}, {f32(2.0**40)}
    v_cmp_nlt_f32 vcc, v{T}, v{T+1}
    s_and_b64 vcc, vcc, s[52:53]
    s_cselect_b32 s59, 1, 0
    s_andn2_b32 s59, s59, s58
    v_mov_b32 v{T}, s59
    ds_write_b32 v11, v{T}""")
    for i in range(1, 4):
        a(f'ds_write_b32 v{5+i}, v{NM+i}')
        for q in range(4): a(f'ds_write_b128 v{2+i}, {vr(O+16*i+4*q)} offset:{1024*q}')
    a('s_waitcnt lgkmcnt(0)\ns_barrier')
    R = S
    R = 176
    tf = a(f'ds_read_b128 {vr(T)}, v12')
    for j in range(3): tm = a(f'ds_read_b32 v{T+4+j}, v10 offset:{256*j}')
    tr = {}
    for j in range(3):
        for q in range(4):
            if 4*j + q == 11: a.wait_lg(tm)
            tr[(j, q)] = a(f'ds_read_b128 {vr(R+16*j+4*q)}, v9 offset:{4096*j+1024*q}')
    a(f"""v_or_b32 v{T}, v{T}, v{T+1}
    v_or3_b32 v{T}, v{T}, v{T+2}, v{T+3}
    v_readfirstlane_b32 s59, v{T}
    v_min3_f32 v{T+8}, v{NM}, v{T+4}, v{T+5}
    v_min_f32 v{T+8}, v{T+8}, v{T+6}
    v_sub_f32 v{T+3}, v{T+8}, v{NM}
    v_sub_f32 v{T+4}, v{T+8}, v{T+4}
    v_sub_f32 v{T+5}, v{T+8}, v{T+5}
    v_sub_f32 v{T+6}, v{T+8}, v{T+6}
    v_exp_f32 v{T+3}, v{T+3}
    v_exp_f32 v{T+4}, v{T+4}
    v_exp_f32 v{T+5}, v{T+5}
    v_exp_f32 v{T+6}, v{T+6}
    s_cmp_lg_u32 s59, 0
    s_cbranch_scc1 K2_FALLBACK
    s_waitcnt lgkmcnt(0)
    v_mul_f32 v{T+8}, v{T+3}, v{O+12}""")
    for j in range(3): a(f'v_fmac_f32 v{T+8}, v{T+4+j}, v{R+16*j+12}')
    a(f"""v_mov_b32 v{T+9}, v{T+8}
    v_permlane32_swap_b32 v{T+8}, v{T+9}
    v_rcp_f32 v{T+9}, v{T+9}""")
    for j in range(4): a(f'v_mul_f32 v{T+3+j}, v{T+3+j}, v{T+9}')
    for r in range(16): a(f'v_mul_f32 v{O+r}, v{O+r}, v{T+3}')
    for j in range(3):
        for r in range(16): a(f'v_fmac_f32 v{O+r}, v{T+4+j}, v{R+16*j+r}')
    for d in range(8): a(f'v_cvt_pk_bf16_f32 v{P+d}, v{O+2*d}, v{O+2*d+1}')
    for s in range(2): a(f'buffer_store_dwordx4 {vr(P+4*s)}, v2, s[40:43], s23 offen offset:{1024*s}')
    a(f'{END}:\ns_endpgm')
    KV = 176
    a(f"""K2_FALLBACK:
    s_waitcnt lgkmcnt(0)
    s_barrier
    s_mov_b32 s58, 1
    s_mov_b32 s21, s22
    s_mov_b32 s60, 16""")
    for i in range(4):
        a(f'v_cndmask_b32 v{Q+8*i+6}, v{Q+8*i+6}, 0, s[52:53]')
        a(f'v_mov_b32 v{NM+i}, {f32(-1e38)}')
    for r in range(64): a(f'v_mov_b32 v{O+r}, 0')
    a('K2_FB_LOOP:')
    for d in range(4): a(f'buffer_load_dwordx4 {vr(KV+4*d)}, v2, s[40:43], s21 offen offset:{1024*d}')
    a('s_add_u32 s21, s21, 4096\ns_waitcnt vmcnt(0)')
    for i in range(4):
        for part in range(2): qk(S, lambda p: vr(KV+4*p), i, part)
        rowmax(S, T, T+1)
        a(f"""v_max_f32 v{T}, v{T}, v{NM+i}
        v_sub_f32 v{T+1}, v{NM+i}, v{T}
        v_exp_f32 v{T+1}, v{T+1}
        v_mov_b32 v{NM+i}, v{T}""")
        for r in range(16): a(f'v_sub_f32 v{S+r}, v{S+r}, v{T}')
        for r in range(16): a(f'v_exp_f32 v{S+r}, v{S+r}')
        for r in range(16): a(f'v_mul_f32 v{O+16*i+r}, v{O+16*i+r}, v{T+1}')
        for d in range(8): a(f'v_cvt_pk_bf16_f32 v{P+d}, v{S+2*d}, v{S+2*d+1}')
        for part in range(2):
            a(f'v_mfma_f32_32x32x16_bf16 {vr(O+16*i, 16)}, {vr(KV+8+4*part)}, {vr(P+4*part)}, {vr(O+16*i, 16)}')
    a(f"""s_sub_u32 s60, s60, 1
    s_cmp_lg_u32 s60, 0
    s_cbranch_scc1 K2_FB_LOOP""")
    for i in range(4): a(f'v_xor_b32 v{NM+i}, 0x80000000, v{NM+i}')
    a('s_branch K2_COMB')


def rbc(a):
    a(f"""
    v_and_b32 v1, 63, v0
    v_lshrrev_b32 v2, 6, v0
    v_readfirstlane_b32 s16, v2
    v_lshlrev_b32 v2, 4, v1
    s_and_b32 s17, s2, 7
    s_lshl_b32 s17, s17, 2
    s_bfe_u32 s18, s2, 0x20003
    s_add_u32 s17, s17, s18
    s_lshr_b32 s18, s2, 5
    s_mov_b32 s52, 0
    s_mov_b32 s53, -1
    """)

def hf_offsets(a, sT, sf, dA, dB4, dB2, tmp):
    a(f"""
    s_lshr_b32 s{tmp}, s18, 1
    s_mul_i32 s{tmp}, s{tmp}, 7
    s_mul_i32 s{dA}, s{sT}, 28
    s_add_u32 s{tmp}, s{tmp}, s{dA}
    s_lshl_b32 s{tmp}, s{tmp}, 10
    s_add_u32 s{tmp}, s{tmp}, {HF}
    s_and_b32 s{dB2}, s18, 1
    s_lshl_b32 s{dA}, s{dB2}, 12
    s_add_u32 s{dA}, s{dA}, s{tmp}
    s_lshl_b32 s{dB4}, s{sf}, 11
    s_add_u32 s{dA}, s{dA}, s{dB4}
    s_lshl_b32 s{dB2}, s{dB2}, 3
    s_add_u32 s{dB2}, s{dB2}, s{tmp}
    s_add_u32 s{dB2}, s{dB2}, 3072
    s_add_u32 s{dB4}, s{dA}, 1024
    s_cmp_eq_u32 s{sf}, 0
    s_cselect_b32 s{dB4}, s{dB4}, {OOB}
    s_cselect_b32 s{dB2}, {OOB}, s{dB2}
    """)

def rowmajor_voff(a, vd, sT, sf, t0):
    a(f"""
    v_and_b32 v{vd}, 31, v1
    v_mul_u32_u24 v{vd}, 896, v{vd}
    v_lshrrev_b32 v{t0}, 5, v1
    v_lshl_add_u32 v{vd}, v{t0}, 4, v{vd}
    s_mul_i32 s30, s{sT}, 28672
    s_mul_i32 s31, s18, 112
    s_add_u32 s30, s30, s31
    s_lshl_b32 s31, s{sf}, 6
    s_add_u32 s30, s30, s31
    v_add_u32 v{vd}, s30, v{vd}
    """)

K3_LDS = 16384
def k3(a):
    END = 'K3_END'
    B, ACC, X, R, T = 16, 80, 112, 120, 136
    a(f"""
    s_cmp_ge_u32 s2, 256
    s_cbranch_scc1 {END}
    s_load_dwordx2 s[4:5], s[0:1], 0
    s_load_dwordx2 s[10:11], s[0:1], 64""")
    rbc(a)
    a(f"""
    s_and_b32 s19, s16, 1
    s_lshr_b32 s20, s16, 1
    s_lshl_b32 s21, s17, 1
    s_add_u32 s21, s21, s19
    s_lshl_b32 s22, s21, 1
    s_add_u32 s22, s22, s20
    s_lshl_b32 s22, s22, 14
    s_add_u32 s22, s22, {OF}
    s_lshl_b32 s23, s18, 1
    s_add_u32 s24, s23, s20
    s_xor_b32 s25, s24, 1
    s_lshl_b32 s26, s20, 14
    s_add_u32 s26, s26, {WOF}
    s_lshl_b32 s27, s24, 15
    s_add_u32 s27, s27, s26
    s_lshl_b32 s28, s25, 15
    s_add_u32 s28, s28, s26
    """)
    rowmajor_voff(a, 3, 21, 20, 4)
    a('s_waitcnt lgkmcnt(0)')
    srd(a, 40, 10, WS_REC)
    srd(a, 32, 4, 1835008)
    tok = {}
    for j in range(16):
        o = (j % 4) * 1024
        a(f'buffer_load_dwordx4 {vr(B+4*j)}, v2, s[40:43], s22 offen offset:{o}')
        a(f'buffer_load_dwordx4 {ar(64+4*j)}, v2, s[40:43], s28 offen offset:{o}')
        tok[j] = a(f'buffer_load_dwordx4 {ar(4*j)}, v2, s[40:43], s27 offen offset:{o}')
        if j % 4 == 3 and j < 15:
            a('s_add_u32 s22, s22, 4096\ns_add_u32 s27, s27, 4096\ns_add_u32 s28, s28, 4096')
    for s in range(2): tx = a(f'buffer_load_dwordx4 {vr(X+4*s)}, v3, s[32:35], 0 offen offset:{32*s}')
    hf_offsets(a, 21, 20, 44, 45, 46, 47)
    a(f"""
    s_xor_b32 s30, s16, 2
    s_lshl_b32 s30, s30, 12
    v_add_u32 v4, s30, v2
    s_lshl_b32 s30, s16, 12
    v_add_u32 v5, s30, v2
    s_lshl_b32 s30, s21, 4
    s_add_u32 s30, s30, s24
    s_lshl_b32 s48, s30, 8
    s_add_u32 s48, s48, {ST}
    v_and_b32 v6, 31, v1
    v_lshlrev_b32 v6, 3, v6
    s_cmp_eq_u32 s20, 1
    s_cselect_b64 s[50:51], -1, 0
    v_mov_b32 v7, 0x3f803f80
    v_mov_b32 v{T}, 0
    v_mov_b32 v{T+1}, 0
    """)
    for j in range(16):
        a.wait_vm(tok[j])
        for sl in (1, 0):
            c = '0' if j == 0 else vr(ACC+16*sl, 16)
            a(f'v_mfma_f32_32x32x16_bf16 {vr(ACC+16*sl, 16)}, {ar(64*sl+4*j)}, {vr(B+4*j)}, {c}')
    for q in range(4): a(f'ds_write_b128 v4, {vr(ACC+16+4*q)} offset:{1024*q}')
    a.wait_vm(tx)
    for s in range(2):
        for d in range(2): a(f'v_permlane32_swap_b32 v{X+4*s+d}, v{X+4*s+2+d}')
    a('s_waitcnt lgkmcnt(0)\ns_barrier')
    for q in range(4): a(f'ds_read_b128 {vr(R+4*q)}, v5 offset:{1024*q}')
    for d in range(8):
        a(f"""v_lshlrev_b32 v{B+2*d}, 16, v{X+d}
        v_and_b32 v{B+2*d+1}, 0xffff0000, v{X+d}""")
    for r in range(16): a(f'v_add_f32 v{ACC+r}, v{ACC+r}, v{B+r}')
    a('s_waitcnt lgkmcnt(0)')
    for r in range(16): a(f'v_add_f32 v{ACC+r}, v{ACC+r}, v{R+r}')
    for d in range(8): a(f'v_cvt_pk_bf16_f32 v{X+d}, v{ACC+2*d}, v{ACC+2*d+1}')
    a(f"""buffer_store_dwordx4 {vr(X)}, v2, s[40:43], s44 offen
    buffer_store_dwordx4 {vr(X+4)}, v2, s[40:43], s45 offen
    buffer_store_dwordx2 {vr(X+4, 2)}, v2, s[40:43], s46 offen
    v_cndmask_b32 v{R}, v{X+6}, 0, s[50:51]
    v_cndmask_b32 v{R+1}, v{X+7}, 0, s[50:51]""")
    for d in range(8):
        r = X + d if d < 6 else R + d - 6
        a(f'v_dot2c_f32_bf16 v{T}, v{r}, v7\nv_dot2c_f32_bf16 v{T+1}, v{r}, v{r}')
    a(f"""v_mov_b32 v{T+2}, v{T}
    v_mov_b32 v{T+3}, v{T+1}
    v_permlane32_swap_b32 v{T}, v{T+2}
    v_permlane32_swap_b32 v{T+1}, v{T+3}
    v_add_f32 v{T}, v{T}, v{T+2}
    v_add_f32 v{T+1}, v{T+1}, v{T+3}
    buffer_store_dwordx2 {vr(T, 2)}, v6, s[40:43], s48 offen
    {END}:
    s_endpgm""")

def interleave(a, main, side, per):
    side = list(side)
    for m in main:
        m()
        c = 0
        while side and c < per:
            ins = side.pop(0)
            a(ins); c += 2 if ins.startswith(('v_exp', 'v_rcp')) else 1
    for ins in side: a(ins)

K4_LB, K4_LS = 0, 57344
K4_LDS = K4_LS + 2048
def k4(a):
    END = 'K4_END'
    ACC, BB, SP, CS, AUG, BA, RS, PK, T = 16, 80, 96, 112, 120, 128, 136, 140, 156
    a(f"""
    s_cmp_ge_u32 s2, 256
    s_cbranch_scc1 {END}
    s_load_dwordx2 s[10:11], s[0:1], 64""")
    rbc(a)
    a(f"""
    s_mul_i32 s19, s18, 7
    s_add_u32 s19, s19, s16
    s_mul_i32 s20, s19, 28672
    s_add_u32 s20, s20, {W1F}
    s_add_u32 s21, s20, {4*28672}
    s_lshl_b32 s22, s19, 7
    s_add_u32 s22, s22, {CS1}
    s_add_u32 s23, s22, 512
    s_cmp_eq_u32 s16, 3
    s_cselect_b32 s21, {OOB}, s21
    s_cselect_b32 s23, {OOB}, s23
    s_mul_i32 s24, s17, 57344
    s_mul_i32 s25, s16, 14336
    s_add_u32 s24, s24, s25
    s_add_u32 s24, s24, {HF}
    s_lshl_b32 s26, s17, 13
    s_lshl_b32 s27, s16, 10
    s_add_u32 s26, s26, s27
    s_add_u32 s26, s26, {ST}
    v_and_b32 v3, 31, v1
    v_lshrrev_b32 v4, 5, v1
    v_lshlrev_b32 v5, 3, v3
    v_lshl_add_u32 v5, v4, 12, v5
    v_lshlrev_b32 v6, 2, v3
    s_waitcnt lgkmcnt(0)
    """)
    srd(a, 40, 10, WS_REC)
    for j in range(14):
        if j % 4 == 0:
            a(f's_add_u32 m0, s25, {K4_LB + 1024*j}')
        tb = a(f'buffer_load_dwordx4 v2, s[40:43], s24 offen offset:{1024*(j%4)} lds')
        if j % 4 == 3: a('s_add_u32 s24, s24, 4096')
    for i in range(4): ts = a(f'buffer_load_dwordx2 {vr(SP+2*i, 2)}, v5, s[40:43], s26 offen offset:{256*i}')
    ta = {}
    def aload(f, j):
        ta[(f, j)] = a(f'buffer_load_dwordx4 {ar(112*f+4*j)}, v2, s[40:43], s{20+f} offen offset:{1024*(j%4)}')
        if j % 4 == 3: a(f's_add_u32 s{20+f}, s{20+f}, 4096')
    for j in range(28): aload(0, j)
    a(f's_mov_b32 s28, 7168')
    for f in range(2):
        for p in range(4):
            tc = a(f'buffer_load_dword v{CS+4*f+p}, v6, s[40:43], s{22+f} offen')
            if p < 3: a(f's_add_u32 s{22+f}, s{22+f}, s28')
    a(f"""s_lshl_b32 s27, s16, 9
    s_add_u32 s27, s27, {K4_LS}
    v_lshlrev_b32 v7, 4, v3
    v_lshl_add_u32 v8, v4, 3, v7
    v_add_u32 v8, s27, v8
    v_add_u32 v7, {K4_LS}, v7
    s_mul_i32 s29, s17, 112
    s_add_u32 s29, s29, s19
    s_lshl_b32 s29, s29, 11
    s_add_u32 s29, s29, {AF}""")
    a.wait_vm(ts)
    for e in range(2):
        a(f"""v_add_f32 v{SP+e}, v{SP+e}, v{SP+2+e}
        v_add_f32 v{SP+4+e}, v{SP+4+e}, v{SP+6+e}
        v_add_f32 v{SP+e}, v{SP+e}, v{SP+4+e}""")
    a(f'ds_write_b64 v8, {vr(SP, 2)}')
    a('s_waitcnt lgkmcnt(0)\ns_barrier')
    for w in range(4): tl = a(f'ds_read_b128 {vr(SP+4*w)}, v7 offset:{512*w}')
    def mm(u, j):
        f, tt = divmod(u, 2)
        def go():
            a.wait_vm(ta[(f, j)])
            a.wait_lg(tbr[(u, j)])
            c = '0' if j == 0 else vr(ACC+16*u, 16)
            a(f'v_mfma_f32_32x32x16_bf16 {vr(ACC+16*u, 16)}, {ar(112*f+4*j)}, {vr(BB+4*(j%4))}, {c}')
            nx = 28*u + j + 3
            if nx < 112 and not (nx >= 56 and False): rdB(*divmod(nx, 28))
            if u == 0: aload(1, j)
        return go
    tbr = {}
    def rdB(u, j):
        tbr[(u, j)] = a(f'ds_read_b128 {vr(BB+4*(j%4))}, v2 offset:{K4_LB + ((u%2)*28+j)*1024}')
    def aug(u):
        f, tt = divmod(u, 2)
        def go():
            a(f'v_mfma_f32_32x32x16_bf16 {vr(ACC+16*u, 16)}, {vr(AUG+4*f)}, {vr(BA+4*tt)}, {vr(ACC+16*u, 16)}')
        return go
    def epi(u):
        f, tt = divmod(u, 2)
        L = []
        A0 = ACC + 16*u
        for g in range(4):
            rs = range(4*g, 4*g+4)
            for r in rs: L.append(f'v_mul_f32 v{T+r%4}, v{A0+r}, v{RS+2+tt}')
            for r in rs: L.append(f'v_exp_f32 v{T+r%4}, v{T+r%4}')
            for r in rs: L.append(f'v_mul_f32 v{A0+r}, v{A0+r}, v{RS+tt}')
            for r in rs: L.append(f'v_add_f32 v{T+r%4}, 1.0, v{T+r%4}')
            for r in rs: L.append(f'v_rcp_f32 v{T+r%4}, v{T+r%4}')
            for r in rs: L.append(f'v_mul_f32 v{A0+r}, v{A0+r}, v{T+r%4}')
            for d in (2*g, 2*g+1): L.append(f'v_cvt_pk_bf16_f32 v{PK+8*(u%2)+d}, v{A0+2*d}, v{A0+2*d+1}')
            if g % 2 == 1:
                L.append(f'buffer_store_dwordx4 {vr(PK+8*(u%2)+4*(g//2))}, v2, s[40:43], s{44+u} offen offset:{1024*(g//2)}')
        return L
    a(f"""s_mov_b32 s44, s29
    s_add_u32 s45, s29, {56*2048}
    s_add_u32 s46, s29, {4*2048}
    s_add_u32 s47, s45, {4*2048}""")
    for j in range(3): rdB(0, j)
    for j in range(28): mm(0, j)()
    for e in range(4):
        a(f"""v_add_f32 v{SP+e}, v{SP+e}, v{SP+4+e}
        v_add_f32 v{SP+8+e}, v{SP+8+e}, v{SP+12+e}
        v_add_f32 v{SP+e}, v{SP+e}, v{SP+8+e}""")
    for tt in range(2):
        rowstat(a, SP+2*tt, SP+2*tt+1, BA+4*tt, RS+tt, T, T+1)
        a(f'v_mul_f32 v{RS+2+tt}, {f32(-math.log2(math.e))}, v{RS+tt}')
        for d in range(1, 4): a(f'v_mov_b32 v{BA+4*tt+d}, 0')
    a.wait_vm(tc)
    for f in range(2):
        c, g = CS + 4*f, AUG + 4*f
        a(f"""v_add_f32 v{c}, v{c}, v{c+1}
        v_add_f32 v{c+2}, v{c+2}, v{c+3}
        v_add_f32 v{c}, v{c}, v{c+2}
        v_cvt_pk_bf16_f32 v{c+1}, v{c}, v{c}
        v_and_b32 v{c+1}, 0xffff0000, v{c+1}
        v_sub_f32 v{c+1}, v{c}, v{c+1}
        v_cvt_pk_bf16_f32 v{g}, v{c}, v{c+1}
        v_cndmask_b32 v{g}, v{g}, 0, s[52:53]
        v_mov_b32 v{g+1}, 0
        v_mov_b32 v{g+2}, 0
        v_mov_b32 v{g+3}, 0""")
    aug(0)()
    interleave(a, [mm(1, j) for j in range(3)], [], 0)
    interleave(a, [mm(1, j) for j in range(3, 28)] + [aug(1)], epi(0), 4)
    a('s_cmp_eq_u32 s16, 3\ns_cbranch_scc1 K4_TAIL1')
    interleave(a, [mm(2, j) for j in range(3)], [], 0)
    interleave(a, [mm(2, j) for j in range(3, 28)] + [aug(2)], epi(1), 4)
    interleave(a, [mm(3, j) for j in range(3)], [], 0)
    interleave(a, [mm(3, j) for j in range(3, 28)] + [aug(3)], epi(2), 4)
    for ins in epi(3): a(ins)
    a(f'{END}:\ns_endpgm\nK4_TAIL1:')
    for ins in epi(1): a(ins)
    a('s_endpgm')

K5_LDS = 49152
def k5(a):
    END = 'K5_END'
    ACC, B, H, T = 16, 80, 208, 220
    R = 80
    a(f"""
    s_cmp_ge_u32 s2, 256
    s_cbranch_scc1 {END}
    s_load_dwordx2 s[4:5], s[0:1], 48
    s_load_dwordx2 s[10:11], s[0:1], 64""")
    rbc(a)
    a(f"""
    s_and_b32 s19, s16, 1
    s_lshr_b32 s20, s16, 1
    s_lshl_b32 s21, s17, 1
    s_add_u32 s21, s21, s19
    s_mul_i32 s29, s16, 28672
    s_mul_i32 s22, s21, 114688
    s_add_u32 s22, s22, s29
    s_add_u32 s22, s22, {AF}
    s_xor_b32 s23, s21, 1
    s_mul_i32 s23, s23, 114688
    s_add_u32 s23, s23, s29
    s_add_u32 s23, s23, {AF}
    s_lshl_b32 s24, s18, 1
    s_add_u32 s24, s24, s20
    s_xor_b32 s25, s24, 1
    s_mul_i32 s24, s24, 114688
    s_add_u32 s24, s24, s29
    s_add_u32 s24, s24, {W2F}
    s_mul_i32 s25, s25, 114688
    s_add_u32 s25, s25, s29
    s_add_u32 s25, s25, {W2F}
    s_waitcnt lgkmcnt(0)
    """)
    srd(a, 40, 10, WS_REC)
    srd(a, 32, 4, 1835008)
    tok = {}
    def loads(j):
        o = (j % 4) * 1024
        for i in range(2): a(f'buffer_load_dwordx4 {vr(B+8*(j%16)+4*i)}, v2, s[40:43], s{22+i} offen offset:{o}')
        for i in range(2): tok[j] = a(f'buffer_load_dwordx4 {ar(8*j+4*i)}, v2, s[40:43], s{24+i} offen offset:{o}')
        if j % 4 == 3:
            for i in range(4): a(f's_add_u32 s{22+i}, s{22+i}, 4096')
    for j in range(15): loads(j)
    hf_offsets(a, 21, 20, 44, 45, 46, 47)
    rowmajor_voff(a, 3, 21, 20, 4)
    a(f"""
    s_cmp_eq_u32 s20, 1
    s_cselect_b64 s[50:51], s[52:53], 0
    v_mov_b32 v4, {OOB}
    v_cndmask_b32 v4, v3, v4, s[50:51]
    s_mul_i32 s30, s16, 12288
    v_add_u32 v8, s30, v2""")
    for i in range(1, 4):
        a(f"""s_xor_b32 s30, s16, {i}
        s_mul_i32 s30, s30, 12288
        s_add_u32 s30, s30, {4096*(i-1)}
        v_add_u32 v{4+i}, s30, v2""")
    for j in range(28):
        a.wait_vm(tok[j])
        for sl in (3, 2, 1, 0):
            it, jf = sl & 1, sl >> 1
            c = '0' if j == 0 else vr(ACC+16*sl, 16)
            a(f'v_mfma_f32_32x32x16_bf16 {vr(ACC+16*sl, 16)}, {ar(8*j+4*jf)}, {vr(B+8*(j%16)+4*it)}, {c}')
            if sl == 3 and j + 15 < 28: loads(j + 15)
            if sl == 3 and j == 13:
                a(f"""buffer_load_dwordx4 {vr(H)}, v2, s[40:43], s44 offen
                buffer_load_dwordx4 {vr(H+4)}, v2, s[40:43], s45 offen""")
                th = a(f'buffer_load_dwordx2 {vr(H+8, 2)}, v2, s[40:43], s46 offen')
    for sl in (3, 2, 1):
        for q in range(4): a(f'ds_write_b128 v{4+sl}, {vr(ACC+16*sl+4*q)} offset:{1024*q}')
    a.wait_vm(th)
    a(f'v_or_b32 v{H+4}, v{H+4}, v{H+8}\nv_or_b32 v{H+5}, v{H+5}, v{H+9}')
    for d in range(8):
        a(f"""v_lshlrev_b32 v{T+2*d}, 16, v{H+d}
        v_and_b32 v{T+2*d+1}, 0xffff0000, v{H+d}""")
    a('s_waitcnt lgkmcnt(0)\ns_barrier')
    tr = []
    for i in range(12): tr.append(a(f'ds_read_b128 {vr(R+4*i)}, v8 offset:{1024*i}'))
    for r in range(16): a(f'v_add_f32 v{ACC+r}, v{ACC+r}, v{T+r}')
    for i in range(12):
        a.wait_lg(tr[i])
        for e in range(4): a(f'v_add_f32 v{ACC+4*(i%4)+e}, v{ACC+4*(i%4)+e}, v{R+4*i+e}')
    for d in range(8): a(f'v_cvt_pk_bf16_f32 v{H+d}, v{ACC+2*d}, v{ACC+2*d+1}')
    for s in range(2):
        for d in range(2): a(f'v_permlane32_swap_b32 v{H+4*s+d}, v{H+4*s+2+d}')
    a(f"""buffer_store_dwordx4 {vr(H)}, v3, s[32:35], 0 offen
    buffer_store_dwordx4 {vr(H+4)}, v4, s[32:35], 0 offen offset:32
    {END}:
    s_endpgm""")

KERNELS = [('k1_kernel', k1, K1_LDS), ('k2_kernel', k2, K2_LDS), ('k3_kernel', k3, K3_LDS), ('k4_kernel', k4, K4_LDS), ('k5_kernel', k5, K5_LDS)]

HEADER = open('sequential_preLN__mha_block__dense_activation_silu__prompt.s.ref').read().split('; Override launch')[0]

def build(kernels):
    txt = HEADER
    for name, fn, lds in kernels:
        txt += f'; @launch kernel={name} grid=(256,1,1) block=(256,1,1) lds={lds}\n'
    txt += '.amdgcn_target "amdgcn-amd-amdhsa--gfx950"\n.text\n'
    for name, fn, lds in kernels:
        a = Asm()
        fn(a)
        txt += f'.globl {name}\n.p2align 8\n.type {name},@function\n{name}:\n' + a.finalize()
    txt += '.section .rodata,"a"\n'
    for name, fn, lds in kernels:
        txt += f'''.p2align 6
.amdhsa_kernel {name}
  .amdhsa_next_free_vgpr 512
  .amdhsa_next_free_sgpr 102
  .amdhsa_accum_offset 256
  .amdhsa_group_segment_fixed_size 0
  .amdhsa_kernarg_size 72
  .amdhsa_user_sgpr_count 2
  .amdhsa_user_sgpr_kernarg_segment_ptr 1
  .amdhsa_system_sgpr_workgroup_id_x 1
.end_amdhsa_kernel
'''
    return txt

if __name__ == '__main__':
    out = sys.argv[1] if len(sys.argv) > 1 else 'sequential_preLN__mha_block__dense_activation_silu__prompt.s'
    open(out, 'w').write(build(KERNELS))
```

```python
import sys, struct, math
from dsl import Asm

MB = 1 << 20
QF, KVF, OF, HF, ST, FLG, W1F, CS1, W2F, AF = 0, 2*MB, 6*MB, 8*MB, 9*MB + 768*1024, 10*MB, 12*MB, 13*MB + 768*1024, 14*MB, 16*MB
WS_REC = 24*MB
OOB = 0x40000000
def f32(x): return '0x%08x' % struct.unpack('<I', struct.pack('<f', x))[0]
QSCALE = math.log2(math.e) / math.sqrt(28.0)
SC = 'sc1'

def vr(b, n=4): return 'v[%d:%d]' % (b, b+n-1)
def ar(b, n=4): return 'a[%d:%d]' % (b, b+n-1)

def srd(a, d, base, nrec):
    a(f'''s_mov_b32 s{d}, s{base}
    s_mov_b32 s{d+1}, s{base+1}
    s_mov_b32 s{d+2}, {nrec}
    s_mov_b32 s{d+3}, 0x00020000''')

PROF = False
CYC = False
PROF_OFF = 28*MB
SB = 76
def stamp(a, i):
    if PROF: a(f"{'s_memtime' if CYC else 's_memrealtime'} s[{SB+2*i}:{SB+1+2*i}]")
def prof_end(a, kidx, n):
    if not PROF: return
    stamp(a, n - 1)
    a('s_waitcnt vmcnt(0) lgkmcnt(0)')
    stamp(a, n)
    a(f"""
    s_mov_b32 s64, s40
    s_mov_b32 s65, s41
    s_mov_b32 s66, {64*MB}
    s_mov_b32 s67, 0x00020000
    s_lshl_b32 s68, s2, 2
    s_add_u32 s68, s68, s16
    s_lshl_b32 s68, s68, 6
    s_add_u32 s68, s68, {PROF_OFF + kidx*65536}
    v_mov_b32 v20, 0
    s_waitcnt lgkmcnt(0)""")
    for i in range(n + 1): a(f'v_writelane_b32 v20, s{SB+2*i}, {i}')
    a(f"""v_lshlrev_b32 v21, 2, v1
    v_cmp_gt_u32 vcc, 16, v1
    s_and_saveexec_b64 s[70:71], vcc
    buffer_store_dword v20, v21, s[64:67], s68 offen""")

def rowstat(vsum, vsq, vmb, vrs, t0):
    return f'''v_mul_f32 v{vsum}, {f32(1/448)}, v{vsum}
    v_mul_f32 v{vsq}, {f32(1/448)}, v{vsq}
    v_fma_f32 v{vsq}, -v{vsum}, v{vsum}, v{vsq}
    v_max_f32 v{vsq}, 0, v{vsq}
    v_cvt_pk_bf16_f32 v{vmb}, -v{vsum}, -v{vsum}
    v_cvt_pk_bf16_f32 v{t0}, v{vsq}, v{vsq}
    v_and_b32 v{t0}, 0xffff0000, v{t0}
    v_add_f32 v{t0}, {f32(1e-5)}, v{t0}
    v_cvt_pk_bf16_f32 v{t0}, v{t0}, v{t0}
    v_and_b32 v{t0}, 0xffff0000, v{t0}
    v_sqrt_f32 v{t0}, v{t0}
    v_cvt_pk_bf16_f32 v{t0}, v{t0}, v{t0}
    v_and_b32 v{t0}, 0xffff0000, v{t0}
    v_rcp_f32 v{vrs}, v{t0}'''.split('\n')

def augfrag(c, g):
    return f'''v_add_f32 v{c}, v{c}, v{c+1}
    v_add_f32 v{c+2}, v{c+2}, v{c+3}
    v_add_f32 v{c}, v{c}, v{c+2}
    v_cvt_pk_bf16_f32 v{c+1}, v{c}, v{c}
    v_and_b32 v{c+1}, 0xffff0000, v{c+1}
    v_sub_f32 v{c+1}, v{c}, v{c+1}
    v_cvt_pk_bf16_f32 v{g}, v{c}, v{c+1}
    v_cndmask_b32 v{g}, v{g}, 0, s[52:53]
    v_mov_b32 v{g+1}, 0
    v_mov_b32 v{g+2}, 0
    v_mov_b32 v{g+3}, 0'''.split('\n')

def augfrag8(c, g):
    L = augfrag(c, g)
    return L[:3] + [f'v_mov_b32 v{c+1}, v{c}', f'v_permlane32_swap_b32 v{c}, v{c+1}', f'v_add_f32 v{c}, v{c}, v{c+1}'] + L[3:]

def cost(ins):
    ins = ins.strip()
    return 2 if ins.startswith(('v_exp', 'v_rcp', 'v_sqrt')) else 1

class Side:
    def __init__(self, a): self.a = a; self.q = []
    def add(self, items): self.q += list(items)
    def pop(self, budget):
        c = 0
        while self.q and c < budget:
            x = self.q.pop(0)
            if callable(x): x(); c += 1
            else: self.a(x); c += cost(x)
    def drain(self): self.pop(10**9)

K1_LW, K1_LX, K1_LS, K1_LC = 0, 86016, 143360, 144384
K1_LDS = 144384 + 1536

def k1(a):
    END = 'K1_END'
    XL, ACC, AB, BB, STt, TM = 16, 128, 176, 200, 208, 212
    ONES, DUM = 252, 253
    RF = TM
    a(f"""
    s_cmp_ge_u32 s2, 256
    s_cbranch_scc1 {END}
    s_load_dwordx4 s[4:7], s[0:1], 0
    s_load_dwordx2 s[8:9], s[0:1], 16
    s_load_dwordx4 s[12:15], s[0:1], 32
    s_load_dwordx2 s[10:11], s[0:1], 64""")
    stamp(a, 0)
    a(f"""
    s_getpc_b64 s[60:61]
    K1_PC:
    v_and_b32 v1, 63, v0
    v_lshrrev_b32 v2, 6, v0
    v_and_b32 v3, 3, v0
    v_lshl_add_u32 v3, v3, 2, v2
    v_readfirstlane_b32 s16, v2
    s_and_b32 s17, s2, 7
    s_lshr_b32 s18, s2, 3
    v_lshl_add_u32 v3, v3, 5, s18
    v_lshlrev_b32 v3, 7, v3
    v_min_u32 v3, KF_CODE_END-K1_PC-4, v3
    global_load_dword v{DUM}, v3, s[60:61]
    s_lshr_b32 s19, s17, 1
    s_lshl_b32 s22, s19, 9
    s_lshl_b32 s19, s19, 2
    s_and_b32 s20, s18, 3
    s_add_u32 s19, s19, s20
    s_and_b32 s20, s17, 1
    s_mul_i32 s24, s20, 1280
    s_lshl_b32 s20, s20, 3
    s_lshr_b32 s21, s18, 2
    s_add_u32 s20, s20, s21
    s_lshl_b32 s21, s19, 2
    s_add_u32 s21, s21, s16
    v_lshrrev_b32 v6, 2, v1
    v_mul_u32_u24 v4, 896, v6
    v_and_b32 v7, 3, v1
    v_lshl_add_u32 v8, v7, 7, v4
    v_min_u32 v7, 2, v7
    v_lshl_add_u32 v9, v7, 7, v4
    v_mul_u32_u24 v5, 187, v1
    v_lshrrev_b32 v5, 11, v5
    v_mul_u32_u24 v7, 11, v5
    v_sub_u32 v7, v1, v7
    v_min_u32 v4, 3, v5
    v_mul_u32_u24 v4, 2688, v4
    v_lshl_add_u32 v4, v7, 7, v4
    v_min_u32 v5, 2, v5
    v_mul_u32_u24 v5, 2688, v5
    v_lshl_add_u32 v5, v7, 7, v5
    s_lshl_b32 s23, s18, 1
    s_add_u32 s23, s23, s16
    s_sub_u32 s23, s23, 1
    s_mul_i32 s54, s23, {4*2688}
    s_add_u32 s54, s54, s24
    s_mul_i32 s55, s23, {3*2688}
    s_add_u32 s55, s55, s24
    s_add_u32 s55, s55, {256*2688}
    s_cmp_eq_u32 s16, 3
    s_cselect_b32 s54, {OOB}, s54
    s_cselect_b32 s55, {OOB}, s55
    s_lshl_b32 s23, s18, 4
    s_add_u32 s22, s22, s23
    s_mul_i32 s22, s22, 896
    s_add_u32 s23, s22, 512
    s_cmp_eq_u32 s16, 0
    s_cselect_b32 s54, s22, s54
    s_cselect_b32 s55, s23, s55
    s_cselect_b64 s[58:59], -1, 0
    v_cndmask_b32 v4, v4, v8, s[58:59]
    v_cndmask_b32 v5, v5, v9, s[58:59]
    v_mul_u32_u24 v2, 896, v6
    v_lshrrev_b32 v7, 4, v1
    v_xor_b32 v7, v7, v1
    v_and_b32 v7, 3, v7
    v_lshl_add_u32 v2, v7, 4, v2
    s_mul_i32 s48, s21, 28672
    s_add_u32 s49, s48, 14336
    s_mov_b32 s47, 0x00020000
    s_mov_b32 s46, 1204224
    s_cmp_eq_u32 s16, 0
    s_cselect_b32 s46, 1835008, s46
    s_waitcnt lgkmcnt(0)
    s_cselect_b32 s44, s4, s6
    s_cselect_b32 s45, s5, s7
    buffer_load_dword v{DUM}, v4, s[44:47], s54 offen
    """)
    stamp(a, 9)
    srd(a, 32, 4, 1835008)
    tx = {}
    def xload(s, rh):
        tx[(s, rh)] = a(f'buffer_load_dwordx4 {vr(XL + 4*(2*s+rh))}, v2, s[32:35], s{48+rh} offen offset:{64*s}')
    for s in range(4):
        for rh in range(2): xload(s, rh)
    srd(a, 36, 6, 1204224)
    for u in range(3):
        a(f"""
        v_add_u32 v9, {64*u}, v1
        v_mul_u32_u24 v10, 171, v9
        v_lshrrev_b32 v10, 11, v10
        v_mul_u32_u24 v11, 12, v10
        v_sub_u32 v11, v9, v11
        v_mul_u32_u24 v10, 2688, v10
        v_lshl_add_u32 v{244+u}, v11, 4, v10
        """)
        if u: a(f'v_subrev_u32 v{244+u}, {1024*u}, v{244+u}')
    a(f"""
    s_mul_i32 s50, s16, 43008
    s_mul_i32 s51, s20, 168
    s_add_u32 s50, s50, s51
    s_mul_i32 s51, s16, 3072
    """)
    tw = {}
    def wload(g, u):
        if u == 0: a(f's_add_u32 m0, s51, {K1_LW + g*12288}')
        tw[g] = a(f'buffer_load_dwordx4 v{244+u}, s[36:39], s50 offen offset:{1024*u} lds')
        if u == 2: a(f's_add_u32 s50, s50, 172032')
    for u in range(3): wload(0, u)
    stamp(a, 10)
    srd(a, 40, 10, WS_REC)
    SEL = 248
    a(f"""
    s_mul_i32 s22, s16, 14336
    s_add_u32 s22, s22, {K1_LX}
    v_lshl_add_u32 v3, v1, 4, s22
    v_bfe_u32 v10, v1, 2, 2
    v_lshrrev_b32 v11, 5, v1
    v_bfe_u32 v12, v1, 4, 1
    v_and_b32 v13, 3, v1
    v_lshlrev_b32 v13, 3, v13
    v_lshl_add_u32 v13, v12, 5, v13
    v_lshl_add_u32 v15, v11, 3, v10
    v_mul_u32_u24 v15, 192, v15
    v_add_u32 v15, v15, v13
    s_mov_b32 s52, 0
    s_mov_b32 s53, -1
    v_mov_b32 v{ONES}, 0x3f803f80
    """)
    for r in range(48): a(f'v_mov_b32 v{ACC+r}, 0')
    for r in range(4): a(f'v_mov_b32 v{STt+r}, 0')
    a('s_mul_i32 s30, s20, 3')
    for f in range(3):
        a(f"""
        s_add_u32 s31, s30, {f}
        s_and_b32 s56, s31, 15
        s_lshl_b32 s56, s56, 6
        s_add_u32 s56, s56, s21
        s_lshr_b32 s{71+f}, s31, 4
        s_lshl_b32 s57, s56, 11
        s_lshl_b32 s56, s56, 12
        s_add_u32 s56, s56, {KVF}
        s_cmp_eq_u32 s{71+f}, 2
        s_cselect_b32 s31, 2048, 0
        s_add_u32 s56, s56, s31
        s_cmp_eq_u32 s{71+f}, 0
        s_cselect_b32 s{62+f}, s57, s56
        s_cselect_b32 s{65+f}, {f32(QSCALE)}, 1.0
        s_cselect_b32 s{68+f}, 0, 0x3f80
        """)
    for s in range(4, 7):
        for rh in range(2): xload(s, rh)
    pre = Side(a)
    pre.add([lambda g=g, u=u: wload(g, u) for g in (1, 2, 3) for u in range(3)])
    pre.add([f'buffer_load_dword v{DUM}, v5, s[44:47], s55 offen'])
    stamp(a, 1)
    def stats(s0, s1, sides):
        for s in range(s0, s1):
            for rh in range(2):
                a.wait_vm(tx[(s, rh)])
                a(f'ds_write_b128 v3, {vr(XL + 4*(2*s+rh))} offset:{(2*(s-s0)+rh)*1024}')
                for sd in sides:
                    if sd.q: sd.pop(1); break
                for d in range(4):
                    r = XL + 4*(2*s+rh) + d
                    a(f'v_dot2c_f32_bf16 v{STt+2*rh}, v{r}, v{ONES}')
                    a(f'v_dot2c_f32_bf16 v{STt+2*rh+1}, v{r}, v{r}')
    stats(0, 7, [pre])
    pre.drain()
    stamp(a, 3)
    a(f"""
    s_cmp_eq_u32 s16, 0
    s_cselect_b32 s44, s12, s14
    s_cselect_b32 s45, s13, s15
    s_mov_b32 s46, 1605632
    s_mul_i32 s54, s2, {49*128}
    v_min_u32 v7, 48, v1
    s_cmp_lt_u32 s16, 2
    s_cbranch_scc1 K1_WARM
    s_mov_b32 s44, s8
    s_mov_b32 s45, s9
    s_mov_b32 s46, 401408
    s_mul_i32 s54, s2, {13*128}
    v_min_u32 v7, 12, v1
    s_cmp_eq_u32 s16, 3
    s_cselect_b32 s54, {OOB}, s54
    K1_WARM:
    v_lshlrev_b32 v7, 7, v7
    s_lshl_b32 s55, s2, 2
    s_add_u32 s55, s55, s16
    s_lshl_b32 s56, s55, 10
    s_add_u32 s56, s56, {FLG}
    s_cmp_lt_u32 s55, 4
    s_cselect_b32 s56, s56, {OOB}
    s_lshl_b32 s55, s55, 12
    s_add_u32 s55, s55, {OF}
    """)
    for r in range(4): a(f'v_mov_b32 v{RF+r}, -1')
    a(f"""
    v_and_b32 v5, 31, v1
    v_lshrrev_b32 v10, 4, v5
    v_lshlrev_b32 v10, 10, v10
    v_and_b32 v12, 15, v1
    v_lshl_add_u32 v10, v12, 6, v10
    v_add_u32 v10, s22, v10
    v_bfe_u32 v12, v1, 2, 2
    v_xor_b32 v4, v11, v12
    v_lshl_add_u32 v4, v4, 4, v10
    v_xor_b32 v12, 32, v4
    v_lshlrev_b32 v5, 4, v1
    v_lshrrev_b32 v10, 4, v1
    v_xor_b32 v10, v10, v1
    v_and_b32 v10, 1, v10
    v_cmp_eq_u32 vcc, 0, v10
    v_cndmask_b32 v{SEL}, 0, v{ONES}, vcc
    v_mov_b32 v{SEL+1}, v{SEL}
    v_mov_b32 v{SEL+2}, v{SEL}
    v_mov_b32 v{SEL+3}, v{SEL}
    """)
    stamp(a, 4)
    a.wait(vm=tw[3])
    a('s_waitcnt lgkmcnt(0)\ns_barrier')
    stamp(a, 5)
    def rdB(j):
        return a(f'ds_read_b128 {vr(BB + 4*(j%2))}, v{12 if j%2 else 4} offset:{(j//2)*2048}')
    def rdA(j, f, addr, dst):
        a(f'ds_read_b64_tr_b16 {vr(dst, 2)}, v{addr} offset:{j*3072 + 56*f}')
        return a(f'ds_read_b64_tr_b16 {vr(dst+2, 2)}, v{addr} offset:{j*3072 + 768 + 56*f}')
    def gpass(sd, budget, hook=None):
        tok = {}
        def Ad(j, f): return AB + 12*(j%2) + 4*f
        rdB(0)
        for f in range(3): tok[(0, f)] = rdA(0, f, 15, Ad(0, f))
        for j in range(14):
            if hook: hook(j)
            for f in range(3):
                a.wait_lg(tok[(j, f)])
                a(f'v_mfma_f32_32x32x16_bf16 {vr(ACC+16*f, 16)}, {vr(Ad(j, f))}, {vr(BB+4*(j%2))}, {vr(ACC+16*f, 16)}')
                if j + 1 < 14:
                    if f == 0: rdB(j+1)
                    tok[(j+1, f)] = rdA(j+1, f, 15, Ad(j+1, f))
                sd.pop(budget if f else budget - 1)
    side = Side(a)
    side.add([lambda s=s, rh=rh: xload(s, rh) for s in range(7, 14) for rh in range(2)])
    side.add([lambda g=g, u=u: wload(g, u) for g in (4, 5, 6) for u in range(3)])
    side.add([f'buffer_store_dwordx4 {vr(RF)}, v5, s[40:43], s55 offen offset:{1024*i} {SC}' for i in range(4)])
    side.add([f'buffer_store_dwordx4 {vr(RF)}, v5, s[40:43], s56 offen {SC}'])
    side.add([f'buffer_load_dword v{DUM}, v7, s[44:47], s54 offen'])
    gpass(side, 1)
    side.drain()
    stamp(a, 6)
    stats(7, 14, [])
    for r in range(4):
        a(f'v_add_f32_dpp v{STt+r}, v{STt+r}, v{STt+r} quad_perm:[1,0,3,2] row_mask:0xf bank_mask:0xf')
    for r in range(4):
        a(f'v_add_f32_dpp v{STt+r}, v{STt+r}, v{STt+r} quad_perm:[2,3,0,1] row_mask:0xf bank_mask:0xf')
    CB = XL
    CSA, SCL, SCA = 104, 124, 116
    a(f"""
    s_lshl_b32 s30, s16, 8
    s_add_u32 s30, s30, {K1_LS}
    v_lshl_add_u32 v9, v6, 3, s30
    ds_write_b64 v9, {vr(STt, 2)}
    ds_write_b64 v9, {vr(STt+2, 2)} offset:128
    v_and_b32 v9, 31, v1
    v_lshl_add_u32 v9, v9, 3, s30
    ds_read_b64 {vr(STt, 2)}, v9
    s_mul_i32 s30, s16, {7*3072}
    v_add_u32 v10, s30, v15
    s_lshl_b32 s30, s16, 2
    s_add_u32 s30, s30, {K1_LC}
    v_and_b32 v9, 15, v1
    v_lshl_add_u32 v9, v9, 4, s30
    """)
    a.wait(vm=tw[6])
    a('s_waitcnt lgkmcnt(0)\ns_barrier')
    stamp(a, 7)
    MBr, RS = STt + 2, STt + 3
    side.add(rowstat(STt, STt+1, MBr, RS, 100))
    toks = [None]*21
    for i in range(6): toks[i] = rdA(i//3, i%3, 10, CB + 4*i)
    for i in range(21):
        j, f = divmod(i, 3)
        a.wait_lg(toks[i])
        c = '0' if j == 0 else vr(CSA+4*f)
        a(f'v_mfma_f32_16x16x32_bf16 {vr(CSA+4*f)}, {vr(SEL)}, {vr(CB+4*i)}, {c}')
        if i + 6 < 21: toks[i+6] = rdA((i+6)//3, (i+6)%3, 10, CB + 4*(i+6))
        else: side.pop(2)
    a(f'v_add_u32 v15, {14*3072}, v15')
    for f in range(3):
        a(f'ds_write_b32 v9, v{CSA+4*f} offset:{f*512}')
        a(f'ds_write_b32 v9, v{CSA+4*f+1} offset:{f*512+256}')
    BA = CB + 12
    PK = CB + 16
    def hook(j):
        if j == 4:
            a('s_waitcnt lgkmcnt(0)\ns_barrier')
            for f in range(3): a(f'ds_read_b128 {vr(CB+4*f)}, v9 offset:{f*512}')
        if j == 6:
            for f in range(3): side.add(augfrag(CB+4*f, CB+4*f))
    side.add(f"""v_and_b32 v9, 31, v1
    v_lshlrev_b32 v9, 4, v9
    v_add_u32 v9, {K1_LC}, v9
    v_mov_b32 v{BA}, v{MBr}
    v_mov_b32 v{BA+1}, 0
    v_mov_b32 v{BA+2}, 0
    v_mov_b32 v{BA+3}, 0
    v_and_b32 v2, 31, v1
    v_mul_u32_u24 v2, 72, v2
    v_lshl_add_u32 v2, v11, 3, v2
    v_add_u32 v2, s22, v2
    v_bfe_u32 v10, v1, 2, 2
    v_lshl_add_u32 v10, v11, 2, v10
    v_mul_u32_u24 v10, 72, v10
    v_add3_u32 v10, v10, v13, s22""".split('\n'))
    side.add([f'v_mul_f32 v{SCA+2*f}, s{65+f}, v{RS}' for f in range(3)])
    side.add([f'v_mov_b32 v{SCL+f}, s{68+f}' for f in range(3)])
    gpass(side, 2, hook)
    side.drain()
    for f in range(3):
        a(f'v_mfma_f32_32x32x16_bf16 {vr(ACC+16*f, 16)}, {vr(CB+4*f)}, {vr(BA)}, {vr(ACC+16*f, 16)}')
    stamp(a, 8)
    for f in range(3):
        ld = f'K1_ED{f}'
        P = PK + 8*f
        for r in range(0, 16, 2):
            a(f'v_pk_mul_f32 {vr(ACC+16*f+r, 2)}, {vr(ACC+16*f+r, 2)}, {vr(SCA+2*f, 2)} op_sel_hi:[1,0]')
        for d in range(8): a(f'v_cvt_pk_bf16_f32 v{P+d}, v{ACC+16*f+2*d}, v{ACC+16*f+2*d+1}')
        a(f"""v_cndmask_b32 v{P+6}, v{P+6}, v{SCL+f}, s[52:53]
        v_cndmask_b32 v{P+7}, v{P+7}, 0, s[52:53]
        s_cmp_eq_u32 s{71+f}, 2
        s_cbranch_scc0 {ld}""")
        for q in range(4): a(f'ds_write_b64 v2, {vr(P+2*q, 2)} offset:{16*q}')
        a('s_waitcnt lgkmcnt(0)')
        for s in range(2):
            for q in range(2):
                a(f'ds_read_b64_tr_b16 {vr(P+4*s+2*q, 2)}, v10 offset:{(16*s+8*q)*72}')
        a(f's_waitcnt lgkmcnt(0)\n{ld}:')
        for s in range(2):
            a(f'buffer_store_dwordx4 {vr(P+4*s)}, v5, s[40:43], s{62+f} offen offset:{1024*s} {K1SC}')
    stamp(a, 2)
    prof_end(a, 0, 12)
    a(f'{END}:\ns_endpgm')
K1SC = 'sc1'
import os
EXP = os.environ.get('EXP', '').split(',')

exec(open('kf.py').read())

KERNELS = [('k1_kernel', k1, K1_LDS), ('kf_kernel', kf, KF_LDS)]

HEADER = open('sequential_preLN__mha_block__dense_activation_silu__prompt.s.ref').read().split('; Override launch')[0]

def build(kernels):
    txt = HEADER
    for name, fn, lds in kernels:
        txt += f'; @launch kernel={name} grid=(256,1,1) block=(256,1,1) lds={lds}\n'
    txt += '.amdgcn_target "amdgcn-amd-amdhsa--gfx950"\n.text\n'
    for name, fn, lds in kernels:
        a = Asm()
        fn(a)
        txt += f'.globl {name}\n.p2align 8\n.type {name},@function\n{name}:\n' + a.finalize()
    txt += '.section .rodata,"a"\n'
    for name, fn, lds in kernels:
        txt += f'''.p2align 6
.amdhsa_kernel {name}
  .amdhsa_next_free_vgpr 512
  .amdhsa_next_free_sgpr 102
  .amdhsa_accum_offset 256
  .amdhsa_group_segment_fixed_size 0
  .amdhsa_kernarg_size 72
  .amdhsa_user_sgpr_count 2
  .amdhsa_user_sgpr_kernarg_segment_ptr 1
  .amdhsa_system_sgpr_workgroup_id_x 1
.end_amdhsa_kernel
'''
    return txt

if __name__ == '__main__':
    if len(sys.argv) > 2 and sys.argv[2].startswith('prof'): PROF = True
    if len(sys.argv) > 2 and sys.argv[2] == 'profc': CYC = True
    out = sys.argv[1] if len(sys.argv) > 1 else 'sequential_preLN__mha_block__dense_activation_silu__prompt.s'
    open(out, 'w').write(build(KERNELS))
```

```python
import sys, gen2
def empty(a): a('s_endpgm')
def build_list(order, kernels):
    txt = gen2.build(kernels)
    lines = txt.split('\n')
    first = next(i for i, l in enumerate(lines) if l.startswith('; @launch'))
    lines = [l for l in lines if not l.startswith('; @launch')]
    lds = {n: l for n, f, l in kernels}
    lines[first:first] = [f'; @launch kernel={n} grid=(256,1,1) block=(256,1,1) lds={lds[n]}' for n in order]
    return '\n'.join(lines)
ks = gen2.KERNELS + [('e_kernel', empty, 0)]
n = [k[0] for k in gen2.KERNELS]
open('vA.s', 'w').write(build_list(n, ks))
open('vB.s', 'w').write(build_list(n + n, ks))
open('vC.s', 'w').write(build_list(n + n + n, ks))
open('vD.s', 'w').write(build_list(['e_kernel'] + n, ks))
open('vE.s', 'w').write(build_list([n[0]] + n, ks))
```
